```python
import torch

def _softmax(x, axis=-1):
    return torch.softmax(x, dim=axis)
def _gelu(x):
    return torch.nn.functional.gelu(x, approximate="tanh")
def _silu(x):
    return torch.nn.functional.silu(x)
def _sigmoid(x):
    return torch.sigmoid(x)
def _layernorm(x, axis=-1, eps=1e-5):
    m = x.mean(dim=axis, keepdim=True)
    v = x.var(dim=axis, keepdim=True, unbiased=False)
    return (x - m) / torch.sqrt(v + eps)
def _scatter_add(tgt, idx, src, axis=0):
    return tgt.clone().index_add_(axis, idx, src)
def _segment_sum(src, seg, n):
    out = torch.zeros((n,) + src.shape[1:], dtype=src.dtype)
    return out.index_add_(0, seg, src)
def _pad(x, pw):
    flat = tuple(v for pair in reversed(pw) for v in pair)
    return torch.nn.functional.pad(x, flat)

kernel_name = 'standalone__mha_block_cached__near_ridge'

def setup_inputs():

    _w = (lambda a: (lambda t: t.to(torch.bfloat16) if t.is_floating_point() else t)(torch.as_tensor(a)))
    B, Sq, D = 8, 256, 448
    H, Sk, Dh = 16, 1024, 256
    return {
        "x": _w((lambda *s: torch.randn(*s, dtype=torch.bfloat16) * 0.8)(B, Sq, D)),
        "k_cache": _w((lambda *s: torch.randn(*s, dtype=torch.bfloat16) * 0.8)(B, H, Sk, Dh)),
        "v_cache": _w((lambda *s: torch.randn(*s, dtype=torch.bfloat16) * 0.05)(B, H, Sk, Dh)),
        "wq": _w((lambda *s: torch.randn(*s, dtype=torch.bfloat16) * 0.8)(D, H * Dh) * (D ** -0.5)),
        "wo": _w((lambda *s: torch.randn(*s, dtype=torch.bfloat16) * 0.05)(H * Dh, D) * ((H * Dh) ** -0.5)),
    }

def reference(x, k_cache, v_cache, wq, wo):
    B, Sq, D = x.shape
    H, Dh = 16, 256
    q = (lambda x, *d: x.permute(*d))((x @ wq).reshape(B, Sq, H, Dh), 0, 2, 1, 3)
    scores = torch.einsum("bhqd,bhkd->bhqk", q, k_cache) * (Dh ** -0.5)
    p = _softmax(scores, axis=-1)
    o = torch.einsum("bhqk,bhkd->bhqd", p, v_cache)
    return (lambda x, *d: x.permute(*d))(o, 0, 2, 1, 3).reshape(B, Sq, H * Dh) @ wo
```

```python
import sys
def gen(pat, fname, nblk=6, iters=8):
    L = []; A = L.append
    A("; @launch grid=(256,1,1) block=(256,1,1) lds=65536")
    A('.amdgcn_target "amdgcn-amd-amdhsa--gfx950"')
    A(".text\n.globl pw_kernel\n.p2align 8\n.type pw_kernel,@function\npw_kernel:")
    A("  s_load_dwordx4 s[4:7], s[0:1], 0")
    A("  v_lshlrev_b32 v1, 4, v0")
    A("  s_waitcnt lgkmcnt(0)")
    A("  s_mov_b32 s8, s4\n s_mov_b32 s9, s5\n s_mov_b32 s10, 0x100000\n s_mov_b32 s11, 0x20000")
    A("  s_mov_b32 s12, s6\n s_mov_b32 s13, s7\n s_mov_b32 s14, 0x1000000\n s_mov_b32 s15, 0x20000")
    A("  s_lshl_b32 s16, s2, 14")
    for k in range(32):
        A(f"  s_add_u32 s17, s16, {k*4096}")
        A(f"  buffer_load_dwordx4 a[{4*k}:{4*k+3}], v1, s[12:15], s17 offen")
    A("  s_waitcnt vmcnt(0)")
    for k in range(16):
        A(f"  s_add_u32 s17, s16, {(k+32)*4096}")
        A(f"  buffer_load_dwordx4 v[{64+4*k}:{64+4*k+3}], v1, s[12:15], s17 offen")
    A("  s_waitcnt vmcnt(0)")
    for k in range(16):
        A(f"  ds_write_b128 v1, v[{64+4*k}:{64+4*k+3}] offset:{k*4096}")
    for k in range(128, 256): A(f"  v_mov_b32 v{k}, 0")
    for k in range(16, 64): A(f"  v_mov_b32 v{k}, 0.5")
    A("  v_and_b32 v2, 63, v0\n v_lshlrev_b32 v2, 4, v2")
    A("  v_and_b32 v3, 63, v0\n v_lshlrev_b32 v3, 3, v3")
    A("  s_waitcnt lgkmcnt(0)\n s_barrier")
    def stamp(k):
        A(f"  s_memtime s[{40+2*k}:{41+2*k}]\n s_memrealtime s[96:97]\n s_waitcnt lgkmcnt(0)\n s_mov_b32 s{41+2*k}, s96")
    for b in range(nblk):
        stamp(b)
        A(f"  s_mov_b32 s20, {iters}")
        A(f"LOOP{b}:")
        pat(A)
        A("  s_sub_u32 s20, s20, 1\n s_cmp_lg_u32 s20, 0\n" + f" s_cbranch_scc1 LOOP{b}")
    stamp(nblk)
    A("  v_lshrrev_b32 v1, 6, v0\n v_lshlrev_b32 v1, 7, v1\n s_lshl_b32 s17, s2, 9\n v_add_u32 v1, s17, v1")
    for k in range(2*(nblk+1)):
        A(f"  v_mov_b32 v2, s{40+k}\n buffer_store_dword v2, v1, s[8:11], 0 offen offset:{4*k}\n s_nop 1")
    A("  s_endpgm")
    A('''.section .rodata,"a"
.p2align 6
.amdhsa_kernel pw_kernel
  .amdhsa_next_free_vgpr 512
  .amdhsa_next_free_sgpr 102
  .amdhsa_accum_offset 256
  .amdhsa_group_segment_fixed_size 0
  .amdhsa_kernarg_size 64
  .amdhsa_user_sgpr_count 2
  .amdhsa_user_sgpr_kernarg_segment_ptr 1
  .amdhsa_system_sgpr_workgroup_id_x 1
.end_amdhsa_kernel''')
    open(fname, "w").write("\n".join(L) + "\n")

def a4(k): return f"a[{4*k}:{4*k+3}]"
def m32(A, acc, a, b): A(f"  v_mfma_f32_32x32x16_bf16 v[{128+16*acc}:{128+16*acc+15}], {a4(a)}, {a4(b)}, v[{128+16*acc}:{128+16*acc+15}]")
def m16(A, acc, a, b): A(f"  v_mfma_f32_16x16x32_bf16 v[{128+4*acc}:{128+4*acc+3}], {a4(a)}, {a4(b)}, v[{128+4*acc}:{128+4*acc+3}]")
def rd(A, k, n): A(f"  ds_read_b128 {a4(k)}, v2 offset:{(n*1024) % 65536}")
def rdt(A, k, n):
    A(f"  ds_read_b64_tr_b16 a[{4*k}:{4*k+1}], v3 offset:{(n*1024) % 65536}")
    A(f"  ds_read_b64_tr_b16 a[{4*k+2}:{4*k+3}], v3 offset:{(n*1024+512) % 65536}")
def sm(A, n):
    A(f"  v_exp_f32 v{32+(n%16)}, v{64+(n%32)}")
    A(f"  v_add_f32 v20, v20, v{32+((n+8)%16)}")
    if n % 2: A(f"  v_cvt_pk_bf16_f32 v{48+(n%8)}, v{32+((n+4)%16)}, v{32+((n+5)%16)}")

def p_32_bare(A):
    for n in range(32): m32(A, n % 8, n % 16, 16 + (n % 16))
def p_32_chain(A):
    for n in range(32): m32(A, 0, n % 16, 16 + (n % 16))
def p_32_shareB(A):
    for n in range(32): m32(A, n % 8, n % 16, 16 + (n // 8))
def p_32_lds1(A):
    for n in range(32):
        m32(A, n % 8, n % 16, 16 + (n % 16)); rd(A, (n + 8) % 16, n)
        if n % 4 == 3: A("  s_waitcnt lgkmcnt(4)")
def p_32_lds05(A):
    for n in range(32):
        m32(A, n % 8, (n // 2) % 16, 16 + (n % 16))
        if n % 2: rd(A, (n // 2 + 8) % 16, n)
        if n % 8 == 7: A("  s_waitcnt lgkmcnt(4)")
def p_attn1(A):
    for n in range(16):
        m32(A, 0, n % 16, 16 + n); rd(A, (n + 8) % 16, n); sm(A, n) if n < 8 else None
        if n % 4 == 3: A("  s_waitcnt lgkmcnt(4)")
    for n in range(16):
        m32(A, n % 8, n % 16, 16 + n // 8); rdt(A, (n + 8) % 16, n); sm(A, n + 8) if n >= 8 else None
        if n % 4 == 3: A("  s_waitcnt lgkmcnt(8)")
def p_16_bare(A):
    for n in range(64): m16(A, n % 32, (n // 2) % 16, 16 + (n % 16))
def p_16_lds1(A):
    for n in range(64):
        m16(A, n % 32, (n // 2) % 16, 16 + (n % 16))
        if n % 2: rd(A, (n // 2 + 8) % 16, n // 2)
        if n % 8 == 7: A("  s_waitcnt lgkmcnt(4)")
def p_16_lds05(A):
    for n in range(64):
        m16(A, n % 32, (n // 4) % 16, 16 + (n % 16))
        if n % 4 == 3: rd(A, (n // 4 + 8) % 16, n // 4)
        if n % 16 == 15: A("  s_waitcnt lgkmcnt(4)")
def p_32_zero(A):
    for n in range(32): A(f"  v_mfma_f32_32x32x16_bf16 v[{128+16*(n%8)}:{128+16*(n%8)+15}], a[128:131], a[132:135], v[{128+16*(n%8)}:{128+16*(n%8)+15}]")
pats = dict(b32=p_32_bare, c32=p_32_chain, s32=p_32_shareB, l32=p_32_lds1, h32=p_32_lds05, at1=p_attn1, b16=p_16_bare, l16=p_16_lds1, h16=p_16_lds05)
if __name__ == "__main__":
  for k, p in pats.items(): gen(p, f"pw_{k}.s")
```

```python
import sys
from gen_pw import gen, a4
def m16(A, n): A(f"  v_mfma_f32_16x16x32_bf16 v[{128+4*(n%32)}:{128+4*(n%32)+3}], a[128:131], a[132:135], v[{128+4*(n%32)}:{128+4*(n%32)+3}]")
def tr(A, n): A(f"  ds_read_b64_tr_b16 a[{2*(n%32)}:{2*(n%32)+1}], v3 offset:{(n*512) % 65536}")
def rd(A, n): A(f"  ds_read_b128 a[{4*(n%16)}:{4*(n%16)+3}], v2 offset:{(n*1024) % 65536}")
def ex(A, n): A(f"  v_exp_f32 v{32+(n%16)}, v{16+(n%16)}")
def ad(A, n): A(f"  v_add_f32 v{48+(n%8)}, v{16+(n%16)}, v{17}")
def sa(A, n): A(f"  s_mov_b32 s30, 0x12345")
def wt(A, n): A(f"  s_waitcnt lgkmcnt(15)")
def mk(*fs):
    def p(A):
        for n in range(64):
            m16(A, n)
            for f in fs: f(A, n)
    return p
def alt(f0, f1):
    def p(A):
        for n in range(64):
            m16(A, n)
            for f in (f0 if n % 2 == 0 else f1): f(A, n)
    return p
pats = dict(m=mk(), tr=mk(tr), rd=mk(rd), ex=mk(ex), trex=mk(tr, ex), extr=mk(ex, tr), adad=mk(ad, ad), tradad=mk(tr, ad, ad), trtr=mk(tr, tr), saex=mk(sa, ex),
            wtex=mk(wt, ex), trad=mk(tr, ad), sasa=mk(sa, sa), sasasa=mk(sa, sa, sa), trtr_ex=alt((tr, tr), (ex,)), trwt=mk(tr, wt), rdex=mk(rd, ex), adadad=mk(ad,ad,ad))
for k, p in pats.items(): gen(p, f"is_{k}.s", nblk=6, iters=8)
print(" ".join(f"is_{k}.s" for k in pats))
print(",".join(f'"dev/is_{k}.s"' for k in pats))
```
